```python
import torch

def _softmax(x, axis=-1):
    return torch.softmax(x, dim=axis)
def _gelu(x):
    return torch.nn.functional.gelu(x, approximate="tanh")
def _silu(x):
    return torch.nn.functional.silu(x)
def _sigmoid(x):
    return torch.sigmoid(x)
def _layernorm(x, axis=-1, eps=1e-5):
    m = x.mean(dim=axis, keepdim=True)
    v = x.var(dim=axis, keepdim=True, unbiased=False)
    return (x - m) / torch.sqrt(v + eps)
def _scatter_add(tgt, idx, src, axis=0):
    return tgt.clone().index_add_(axis, idx, src)
def _segment_sum(src, seg, n):
    out = torch.zeros((n,) + src.shape[1:], dtype=src.dtype)
    return out.index_add_(0, seg, src)
def _pad(x, pw):
    flat = tuple(v for pair in reversed(pw) for v in pair)
    return torch.nn.functional.pad(x, flat)

kernel_name = 'parallel_sum__mha_block_cached__dense_activation_relu__decode'

def setup_inputs():

    _w = (lambda a: (lambda t: t.to(torch.bfloat16) if t.is_floating_point() else t)(torch.as_tensor(a)))
    def _A_setup():
        B, Sq, D = 8, 1, 1024
        H, Sk, Dh = 32, 4096, 128
        return {
            "x": _w((lambda *s: torch.randn(*s, dtype=torch.bfloat16) * 0.05)(B, Sq, D)),
            "k_cache": _w((lambda *s: torch.randn(*s, dtype=torch.bfloat16) * 3.2)(B, H, Sk, Dh)),
            "v_cache": _w((lambda *s: torch.randn(*s, dtype=torch.bfloat16) * 1.6)(B, H, Sk, Dh)),
            "wq": _w((lambda *s: torch.randn(*s, dtype=torch.bfloat16) * 3.2)(D, H * Dh) * (D ** -0.5)),
            "wo": _w((lambda *s: torch.randn(*s, dtype=torch.bfloat16) * 1.6)(H * Dh, D) * ((H * Dh) ** -0.5)),
        }
    _A_in = _A_setup()

    def _B_setup():
        B, S, D, Dff = 8, 1, 1024, 3584
        return {
            "x": _w((lambda *s: torch.randn(*s, dtype=torch.bfloat16) * 0.05)(B, S, D)),
            "w1": _w((lambda *s: torch.randn(*s, dtype=torch.bfloat16) * 0.05)(D, Dff)),
            "w2": _w((lambda *s: torch.randn(*s, dtype=torch.bfloat16) * 0.05)(Dff, D)),
        }
    _B_in = _B_setup()

    return {
        "A_x": _A_in["x"],
        "A_k_cache": _A_in["k_cache"],
        "A_v_cache": _A_in["v_cache"],
        "A_wq": _A_in["wq"],
        "A_wo": _A_in["wo"],
        "B_x": _B_in["x"],
        "B_w1": _B_in["w1"],
        "B_w2": _B_in["w2"],
    }

def reference(A_x, A_k_cache, A_v_cache, A_wq, A_wo, B_x, B_w1, B_w2):
    def _A_ref(x, k_cache, v_cache, wq, wo):
        B, Sq, D = x.shape
        H, Dh = 32, 128
        q = (lambda x, *d: x.permute(*d))((x @ wq).reshape(B, Sq, H, Dh), 0, 2, 1, 3)
        scores = torch.einsum("bhqd,bhkd->bhqk", q, k_cache) * (Dh ** -0.5)
        p = _softmax(scores, axis=-1)
        o = torch.einsum("bhqk,bhkd->bhqd", p, v_cache)
        return (lambda x, *d: x.permute(*d))(o, 0, 2, 1, 3).reshape(B, Sq, H * Dh) @ wo

    def _B_ref(x, w1, w2):
        h = torch.einsum("bsd,df->bsf", x, w1)
        zero = torch.zeros_like(h)
        h = torch.maximum(h, zero)
        return torch.einsum("bsf,fd->bsd", h, w2)

    x = A_x
    xn = _layernorm(x, axis=-1)
    return x + _A_ref(xn, A_k_cache, A_v_cache, A_wq, A_wo) + _B_ref(xn, B_w1, B_w2)
```

```python
import re
def regs(tok):
    tok = tok.strip()
    m = re.fullmatch(r'(-|\|)?([vsa])(\d+)\|?', tok)
    if m: return [(m.group(2), int(m.group(3)))]
    m = re.fullmatch(r'([vsa])\[(\d+):(\d+)\]', tok)
    if m: return [(m.group(1), i) for i in range(int(m.group(2)), int(m.group(3)) + 1)]
    if tok == 'vcc': return [('s', 'vcc')]
    if tok == 'exec': return [('s', 'exec')]
    if tok == 'm0': return [('s', 'm0')]
    return []
TRANS = ('v_exp_f32', 'v_log_f32', 'v_rcp_f32', 'v_rsq_f32', 'v_sqrt_f32', 'v_sin_f32', 'v_cos_f32')
class I:
    def __init__(s, line, n):
        s.line = line; s.n = n
        parts = line.split(None, 1)
        s.op = parts[0]
        rest = parts[1] if len(parts) > 1 else ''
        ops = [o.strip() for o in rest.split(',')]
        if ops:
            ops[-1] = ops[-1].split(' ')[0] if ops[-1] else ''
        s.ops = ops
        op = s.op
        s.valu = op.startswith('v_')
        s.dpp = '_dpp' in op or 'row_' in line or 'quad_perm' in line
        s.trans = any(op.startswith(t) for t in TRANS)
        s.dot = op.startswith('v_dot')
        s.perml = op.startswith('v_permlane')
        s.vmem = op.startswith(('buffer_', 'global_', 'flat_'))
        s.ds = op.startswith('ds_')
        s.salu = op.startswith('s_') and not op.startswith(('s_waitcnt', 's_nop', 's_barrier', 's_cbranch', 's_branch', 's_endpgm', 's_sleep', 's_setprio'))
        s.w = []; s.r = []
        allr = [regs(o) for o in ops]
        if s.valu:
            if op.startswith('v_cmp'):
                s.w = allr[0]; s.r = sum(allr[1:], [])
            elif op.startswith('v_readfirstlane') or op.startswith('v_readlane'):
                s.w = allr[0]; s.r = sum(allr[1:], [])
            elif s.perml:
                s.w = allr[0] + allr[1]; s.r = allr[0] + allr[1]
            else:
                s.w = allr[0]; s.r = sum(allr[1:], [])
                if op.startswith(('v_fmac', 'v_dot2c', 'v_writelane')) or ('bank_mask' in line or 'row_mask' in line):
                    s.r += allr[0]
                if op.startswith(('v_add_co', 'v_addc_co', 'v_sub_co')):
                    s.w = allr[0] + allr[1]; s.r = sum(allr[2:], [])
                if op.startswith('v_cndmask') and len(ops) == 4 and ops[3] == 'vcc': pass
        elif s.vmem:
            if 'load' in op and 'lds' not in line:
                s.w = allr[0]; s.r = sum(allr[1:], [])
            elif 'atomic' in op:
                s.r = sum(allr, [])
                if ' sc0' in line: s.w = allr[0]
            else:
                s.r = sum(allr, [])
            s.store_wide = ('store_dwordx4' in op or 'store_dwordx3' in op)
        elif s.ds:
            if 'read' in op or 'bpermute' in op or 'swizzle' in op:
                s.w = allr[0]; s.r = sum(allr[1:], [])
            else:
                s.r = sum(allr, [])
        elif s.salu:
            if op.startswith('s_cmp'):
                s.r = sum(allr, [])
            else:
                s.w = allr[0] if allr else []; s.r = sum(allr[1:], [])
                if 'saveexec' in op: s.w += [('s', 'exec')]
        if op == 's_nop': s.ws = int(ops[0], 0) + 1
        else: s.ws = 1
def check(text, verbose=True):
    lines = []
    for ln in text.split('\n'):
        l = ln.split(';')[0].split('//')[0].strip()
        if not l or l.startswith('.') or l.endswith(':'):
            if l.endswith(':'): lines.append(None)
            continue
        lines.append(l)
    ins = []
    for l in lines:
        if l is None: continue
        ins.append(I(l, len(ins)))
    errs = []
    for i, c in enumerate(ins):
        dist = 0
        for j in range(i - 1, max(-1, i - 24), -1):
            p = ins[j]
            need = 0; why = ''
            pw = set(p.w)
            cr = set(c.r); cw = set(c.w)
            pv = {x for x in pw if x[0] == 'v'}; ps = {x for x in pw if x[0] == 's'}
            if p.valu:
                if c.dpp and c.valu and c.ops:
                    idx = 1
                    d = set(regs(c.ops[idx])) if len(c.ops) > idx else set()
                    if pv & d: need = max(need, 2); why = 'VALU->DPP'
                if c.op.startswith(('v_readfirstlane', 'v_readlane')) and pv & cr: need = max(need, 1); why = 'VALU->readlane'
                if c.perml and pv & cr: need = max(need, 2); why = 'VALU->permlane'
                if p.trans and c.valu and not c.trans and pv & cr: need = max(need, 1); why = 'trans->VALU'
                if p.dot and (pv & (cr | cw)) and c.op.replace('_dpp', '').replace('_e32', '').replace('_e64', '') != p.op.replace('_dpp', '').replace('_e32', '').replace('_e64', ''):
                    need = max(need, 3); why = 'dot->other'
                if p.dot and c.dot and c.op.replace('_dpp','') == p.op.replace('_dpp',''):
                    ab = set(sum([regs(o) for o in c.ops[1:3]], []))
                    if pv & ab: need = max(need, 3); why = 'dot->dot srcAB'
                if ps and c.vmem and ps & cr: need = max(need, 5); why = 'VALU sgpr->VMEM'
                if ps and c.valu and (ps & cr or (('s', 'vcc') in ps and c.op.startswith('v_cndmask') and c.ops[-1] == 'vcc')): need = max(need, 2); why = 'VALU sgpr->VALU'
                if ps and c.op.startswith(('v_readlane', 'v_writelane')) and ps & cr: need = max(need, 4); why = 'VALU sgpr->lane sel'
                if ('s', 'exec') in ps and c.dpp: need = max(need, 5); why = 'VALU exec->DPP'
            if p.vmem and getattr(p, 'store_wide', False) and c.valu and set(regs(p.ops[0]) if p.op.startswith('buffer') else regs(p.ops[1])) & cw:
                need = max(need, 2); why = 'wide store WAR'
            if p.salu and ('s', 'm0') in pw and (c.op.startswith('v_writelane') or 'lds' in c.line) and 'm0' in c.line + ' m0':
                if 'm0' in c.line or 'lds' in c.line: need = max(need, 1); why = 'm0'
            if need > dist:
                errs.append(f"hazard {why}: need {need} have {dist}\n   P: {p.line}\n   C: {c.line}")
            dist += p.ws
            if dist >= 6: break
    if verbose:
        for e in errs: print(e)
    return errs
if __name__ == '__main__':
    import sys
    errs = check(open(sys.argv[1]).read())
    print(len(errs), 'hazards')
```

```python
import sys, argparse
KN = "parallel_sum__mha_block_cached__dense_activation_relu__decode_kernel"

HEADER = """; Kernarg layout (88 bytes): 0 A_x | 8 A_k_cache | 16 A_v_cache | 24 A_wq | 32 A_wo | 40 B_x | 48 B_w1 | 56 B_w2
"""

V_LANE, V_T, V_KV, V_W, V_O, V_LS, V_LP, V_MAX = 0, 1, 2, 3, 4, 5, 6, 7
ACCA = 8
ACCW = 16
VQ = 24
PW_LO, PW_HI, PV_LO, PV_HI = 28, 29, 30, 31
V_FLAG, V_ATOM = 32, 33
PA = 34
T = 38
RING = 48
WAREA = 128
TK = 128

S_W, S_B, S_H = 3, 26, 27
SRD_KV, SRD_W, SRD_A, SRD_X, SRD_D, SRD_WS, SRD_O = 28, 32, 36, 40, 44, 48, 52
S_KVOFF, S_WOFF, S_WSTEP, S_IT, S_AOFF = 56, 57, 58, 59, 60
S_M1, S_M0 = 62, 64
S_T = 66
S_ZERO = 76

L_XN, L_S, L_RQ, L_RH, L_RO, L_HP, L_ML = 0, 4096, 20480, 24576, 28672, 32768, 36864
LDS_BYTES = 36864 + 256
WS_ATT, WS_FFN, WS_CNT = 0, 32768, 65536
WS_BYTES = 65536 + 8 * 256

def v(i, n=1): return f"v{i}" if n == 1 else f"v[{i}:{i+n-1}]"
def s(i, n=1): return f"s{i}" if n == 1 else f"s[{i}:{i+n-1}]"

class Gen:
    def __init__(self, opt):
        self.L = []; self.o = opt
    def e(self, t): self.L.append("    " + t)
    def lab(self, t): self.L.append(t + ":")
    def c(self, t): self.L.append("    ; " + t)
    def nop(self, n): self.e(f"s_nop {n-1}")

    def srd(self, r, lo, hi, nrec):
        pass
    def allreduce(self, x, tmp, op):
        for k in (8, 4, 2, 1):
            self.nop(2)
            self.e(f"{op}_dpp {v(x)}, {v(x)}, {v(x)} row_ror:{k} row_mask:0xf bank_mask:0xf")
        self.e(f"v_mov_b32 {v(tmp)}, {v(x)}")
        self.nop(2)
        self.e(f"v_permlane16_swap_b32 {v(x)}, {v(tmp)}")
        self.e(f"{op} {v(x)}, {v(x)}, {v(tmp)}")
        self.e(f"v_mov_b32 {v(tmp)}, {v(x)}")
        self.nop(2)
        self.e(f"v_permlane32_swap_b32 {v(x)}, {v(tmp)}")
        self.e(f"{op} {v(x)}, {v(x)}, {v(tmp)}")
    def bf16r(self, d, x):
        self.e(f"v_cvt_pk_bf16_f32 {v(d)}, {v(x)}, {v(x)}")
        self.e(f"v_lshlrev_b32 {v(d)}, 16, {v(d)}")
    def rowreduce(self, a):
        self.nop(3)
        for e_ in range(4): self.e(f"v_permlane32_swap_b32 {v(a+e_)}, {v(a+e_+4)}")
        for e_ in range(4): self.e(f"v_add_f32 {v(a+e_)}, {v(a+e_)}, {v(a+e_+4)}")
        self.nop(2)
        for e_ in range(2): self.e(f"v_permlane16_swap_b32 {v(a+e_)}, {v(a+e_+2)}")
        for e_ in range(2): self.e(f"v_add_f32 {v(a+e_)}, {v(a+e_)}, {v(a+e_+2)}")
    def pv(self, acc, plo, phi, slot, lane):
        for d in range(4):
            self.e(f"v_dot2c_f32_bf16_dpp {v(acc+2*d)}, {v(plo)}, {v(slot+d)} row_newbcast:{lane} row_mask:0xf bank_mask:0xf")
        for d in range(4):
            self.e(f"v_dot2c_f32_bf16_dpp {v(acc+2*d+1)}, {v(phi)}, {v(slot+d)} row_newbcast:{lane} row_mask:0xf bank_mask:0xf")
    def kind(self, p):
        return ('W', p // 5) if p % 5 == 4 else ('K', (p // 5) * 4 + p % 5)
    def issue(self, p):
        k, i = self.kind(p)
        slot = RING + 4 * p
        if k == 'K':
            off = (i & 3) * 1024
            o = f" offset:{off}" if off else ""
            self.e(f"buffer_load_dwordx4 {v(slot,4)}, {v(V_KV)}, {s(SRD_KV,4)}, {s(S_KVOFF)} offen{o} {self.o.kvflags}")
            if (i & 3) == 3: self.e(f"s_add_u32 {s(S_KVOFF)}, {s(S_KVOFF)}, 32768")
        else:
            self.e(f"buffer_load_dwordx4 {v(slot,4)}, {v(V_W)}, {s(SRD_W,4)}, {s(S_WOFF)} offen {self.o.wflags}")
            self.e(f"s_add_u32 {s(S_WOFF)}, {s(S_WOFF)}, {s(S_WSTEP)}")
    def issueA(self, n, voff, step):
        self.e(f"buffer_load_dwordx4 {v(WAREA+4*n,4)}, {v(voff)}, {s(SRD_A,4)}, {s(S_AOFF)} offen {self.o.wflags}")
        self.e(f"s_add_u32 {s(S_AOFF)}, {s(S_AOFF)}, {step}")
    def wcons(self, base):
        for n in range(32):
            self.e(f"s_waitcnt vmcnt({base - n})")
            j = n >> 4
            self.pv(ACCA, PA + 2*j, PA + 2*j + 1, WAREA + 4*n, n & 15)
    def read8sum2(self, addr, d0, d1, tmp):
        for w in range(8):
            self.e(f"ds_read2st64_b32 {v(tmp+2*w,2)}, {v(addr)} offset0:{2*w} offset1:{2*w+1}")
        self.e("s_waitcnt lgkmcnt(0)")
        for st in (8, 4, 2):
            for i in range(0, st, 2):
                self.e(f"v_add_f32 {v(tmp+i)}, {v(tmp+i)}, {v(tmp+i+st)}")
                self.e(f"v_add_f32 {v(tmp+i+1)}, {v(tmp+i+1)}, {v(tmp+i+1+st)}")

    def gen(self):
        e, lab, c = self.e, self.lab, self.c
        o = self.o
        L = self.L
        L.append(HEADER.rstrip("\n"))
        L.append(f"; @launch grid=(256,1,1) block=(512,1,1) lds={LDS_BYTES}")
        L.append('.amdgcn_target "amdgcn-amd-amdhsa--gfx950"')
        L.append(".text"); L.append(f".globl {KN}"); L.append(".p2align 8"); L.append(f".type {KN},@function"); L.append(f"{KN}:")
        e("s_cmp_ge_u32 s2, 256"); e("s_cbranch_scc1 L_done")
        e("s_load_dwordx16 s[4:19], s[0:1], 0")
        e("s_load_dwordx4 s[20:23], s[0:1], 64")
        e("s_load_dwordx2 s[24:25], s[0:1], 80")
        if o.stamps: e("s_memrealtime s[90:91]")
        R, C = T, T + 1
        e(f"v_lshrrev_b32 {v(V_T)}, 6, v0")
        e(f"v_and_b32 v0, 63, v0")
        e(f"v_readfirstlane_b32 {s(S_W)}, {v(V_T)}")
        e(f"v_lshrrev_b32 {v(R)}, 4, v0")
        e(f"v_and_b32 {v(C)}, 15, v0")
        e(f"v_lshlrev_b32 {v(V_KV)}, 4, v0")
        e(f"v_lshlrev_b32 {v(T+2)}, 4, {v(C)}")
        e(f"v_lshl_add_u32 {v(V_LS)}, {v(R)}, 13, {v(T+2)}")
        e(f"v_lshl_add_u32 {v(V_O)}, {v(R)}, 11, {v(T+2)}")
        e(f"v_mul_u32_u24 {v(V_W)}, 7168, {v(R)}")
        e(f"v_add_u32 {v(V_W)}, {v(V_W)}, {v(T+2)}")
        e(f"v_lshlrev_b32 {v(V_T)}, 5, v0")
        e(f"v_lshl_add_u32 {v(V_LP)}, {v(C)}, 2, {v(R)}")
        e(f"v_lshlrev_b32 {v(V_MAX)}, 1, {v(V_LP)}")
        e(f"s_lshr_b32 {s(S_B)}, s2, 5"); e(f"s_and_b32 {s(S_H)}, s2, 31")
        e(f"s_lshl_b32 {s(S_T)}, {s(S_B)}, 11")
        e(f"s_lshl_b32 {s(S_T+1)}, {s(S_H)}, 8")
        e(f"s_lshl_b32 {s(S_T+2)}, s2, 20")
        e(f"s_lshl_b32 {s(S_AOFF)}, {s(S_W)}, 20")
        e(f"s_lshl_b32 {s(S_T+3)}, {s(S_W)}, 8")
        e(f"s_lshl_b32 {s(S_KVOFF)}, {s(S_W)}, 12")
        e(f"s_mul_i32 {s(S_WOFF)}, {s(S_W)}, {128*7168}")
        e(f"s_mov_b32 {s(S_WSTEP)}, {4*7168}")
        e("s_waitcnt lgkmcnt(0)")
        e(f"s_add_u32 {s(SRD_X)}, s4, {s(S_T)}"); e(f"s_addc_u32 {s(SRD_X+1)}, s5, 0")
        e(f"s_mov_b32 {s(SRD_X+2)}, 2048"); e(f"s_mov_b32 {s(SRD_X+3)}, 0x20000")
        e(f"buffer_load_dwordx4 {v(T+2,4)}, {v(V_T)}, {s(SRD_X,4)}, 0 offen")
        e(f"buffer_load_dwordx4 {v(T+6,4)}, {v(V_T)}, {s(SRD_X,4)}, 0 offen offset:16")
        e(f"buffer_load_ushort {v(PA)}, {v(V_MAX)}, {s(SRD_X,4)}, {s(S_T+3)} offen")
        e(f"buffer_load_ushort {v(PA+2)}, {v(V_MAX)}, {s(SRD_X,4)}, {s(S_T+3)} offen offset:128")
        e(f"s_add_u32 {s(SRD_A)}, s10, {s(S_T+1)}"); e(f"s_addc_u32 {s(SRD_A+1)}, s11, 0")
        e(f"s_sub_u32 {s(SRD_A+2)}, {1024*8192}, {s(S_T+1)}"); e(f"s_mov_b32 {s(SRD_A+3)}, 0x20000")
        for n in range(32): self.issueA(n, V_LS, 32768)
        e(f"s_mov_b32 {s(SRD_D)}, s22"); e(f"s_mov_b32 {s(SRD_D+1)}, s23")
        e(f"s_mov_b32 {s(SRD_D+2)}, 256"); e(f"s_mov_b32 {s(SRD_D+3)}, 0x20000")
        e(f"s_lshl_b32 {s(S_T+4)}, {s(S_B)}, 5")
        e(f"v_mov_b32 {v(V_FLAG)}, 0")
        e(f"v_mov_b32 {v(V_ATOM)}, 1")
        e(f"s_cmp_lg_u32 {s(S_W)}, 0"); e("s_cbranch_scc1 L_noatom")
        e(f"v_mov_b32 {v(V_LP)}, 0")
        e("s_mov_b64 exec, 1")
        e(f"buffer_atomic_add {v(V_ATOM)}, {v(V_LP)}, {s(SRD_D,4)}, {s(S_T+4)} offen sc0")
        e("s_mov_b64 exec, -1")
        e(f"v_lshl_add_u32 {v(V_LP)}, {v(C)}, 2, {v(R)}")
        lab("L_noatom")
        e(f"s_add_u32 {s(SRD_KV)}, s6, {s(S_T+2)}"); e(f"s_addc_u32 {s(SRD_KV+1)}, s7, 0")
        e(f"s_mov_b32 {s(SRD_KV+2)}, 0x100000"); e(f"s_mov_b32 {s(SRD_KV+3)}, 0x20000")
        e(f"s_add_u32 {s(SRD_W)}, s16, {s(S_T+1)}"); e(f"s_addc_u32 {s(SRD_W+1)}, s17, 0")
        e(f"s_sub_u32 {s(S_T+5)}, {1024*7168}, {s(S_T+1)}")
        e(f"s_cmp_lt_u32 {s(S_H)}, 28")
        e(f"s_cselect_b32 {s(SRD_W+2)}, {s(S_T+5)}, 0"); e(f"s_mov_b32 {s(SRD_W+3)}, 0x20000")
        for p in range(20): self.issue(p)
        e(f"s_mov_b32 {s(SRD_WS)}, s24"); e(f"s_mov_b32 {s(SRD_WS+1)}, s25")
        e(f"s_mov_b32 {s(SRD_WS+2)}, {WS_BYTES}"); e(f"s_mov_b32 {s(SRD_WS+3)}, 0x20000")
        e(f"s_mov_b32 {s(S_M1)}, 0xcccccccc"); e(f"s_mov_b32 {s(S_M1+1)}, 0xcccccccc")
        e(f"s_mov_b32 {s(S_M0)}, 0xaaaaaaaa"); e(f"s_mov_b32 {s(S_M0+1)}, 0xaaaaaaaa")
        e(f"s_mov_b32 {s(S_ZERO)}, 0")
        c("LayerNorm statistics (every wave, whole row)")
        e("s_waitcnt vmcnt(52)")
        X = ACCA
        for d in range(8):
            e(f"v_lshlrev_b32 {v(X+2*d)}, 16, {v(T+2+d)}")
            e(f"v_and_b32 {v(X+2*d+1)}, 0xffff0000, {v(T+2+d)}")
        SUM, TMP = T + 2, T + 3
        e(f"v_add_f32 {v(T+2)}, {v(X)}, {v(X+1)}"); e(f"v_add_f32 {v(T+3)}, {v(X+2)}, {v(X+3)}")
        e(f"v_add_f32 {v(T+4)}, {v(X+4)}, {v(X+5)}"); e(f"v_add_f32 {v(T+5)}, {v(X+6)}, {v(X+7)}")
        e(f"v_add_f32 {v(T+6)}, {v(X+8)}, {v(X+9)}"); e(f"v_add_f32 {v(T+7)}, {v(X+10)}, {v(X+11)}")
        e(f"v_add_f32 {v(T+8)}, {v(X+12)}, {v(X+13)}"); e(f"v_add_f32 {v(T+9)}, {v(X+14)}, {v(X+15)}")
        for i in range(4): e(f"v_add_f32 {v(T+2+i)}, {v(T+2+i)}, {v(T+6+i)}")
        e(f"v_add_f32 {v(T+2)}, {v(T+2)}, {v(T+4)}"); e(f"v_add_f32 {v(T+3)}, {v(T+3)}, {v(T+5)}")
        e(f"v_add_f32 {v(SUM)}, {v(T+2)}, {v(T+3)}")
        self.allreduce(SUM, TMP, "v_add_f32")
        e(f"v_mul_f32 {v(SUM)}, 0x3a800000, {v(SUM)}")
        MEAN = T + 4
        e(f"v_mov_b32 {v(MEAN)}, {v(SUM)}")
        for i in range(16): e(f"v_sub_f32 {v(X+i)}, {v(X+i)}, {v(MEAN)}")
        e(f"v_mul_f32 {v(T+2)}, {v(X)}, {v(X)}"); e(f"v_mul_f32 {v(T+3)}, {v(X+1)}, {v(X+1)}")
        for i in range(2, 16, 2):
            e(f"v_fmac_f32 {v(T+2)}, {v(X+i)}, {v(X+i)}"); e(f"v_fmac_f32 {v(T+3)}, {v(X+i+1)}, {v(X+i+1)}")
        e(f"v_add_f32 {v(T+2)}, {v(T+2)}, {v(T+3)}")
        self.allreduce(T + 2, T + 3, "v_add_f32")
        e(f"v_mul_f32 {v(T+2)}, 0x3a800000, {v(T+2)}")
        self.bf16r(T + 2, T + 2)
        e(f"v_add_f32 {v(T+2)}, 0x3727c5ac, {v(T+2)}")
        self.bf16r(T + 2, T + 2)
        e(f"v_sqrt_f32 {v(T+2)}, {v(T+2)}")
        self.nop(1)
        self.bf16r(T + 2, T + 2)
        self.bf16r(MEAN, MEAN)
        e(f"v_rcp_f32 {v(T+3)}, {v(T+2)}")
        for j in range(2):
            x = PA + 2*j
            e(f"v_lshlrev_b32 {v(x)}, 16, {v(x)}")
            e(f"v_sub_f32 {v(x)}, {v(x)}, {v(MEAN)}")
            self.bf16r(x, x)
            e(f"v_mul_f32 {v(T+5)}, {v(x)}, {v(T+3)}")
            e(f"v_fma_f32 {v(T+6)}, -{v(T+5)}, {v(T+2)}, {v(x)}")
            e(f"v_fma_f32 {v(T+5)}, {v(T+6)}, {v(T+3)}, {v(T+5)}")
            e(f"v_cvt_pk_bf16_f32 {v(x)}, {v(T+5)}, 0")
            e(f"v_lshlrev_b32 {v(x+1)}, 16, {v(x)}")
        e(f"s_lshl_b32 {s(S_T+6)}, {s(S_W)}, 9")
        e(f"v_lshlrev_b32 {v(T+5)}, 2, {v(V_LP)}")
        e(f"v_add_u32 {v(T+5)}, {s(S_T+6)}, {v(T+5)}")
        e(f"ds_write_b32 {v(T+5)}, {v(PA)} offset:{L_XN}")
        e(f"ds_write_b32 {v(T+5)}, {v(PA+2)} offset:{L_XN+256}")
        for i in range(16): e(f"v_mov_b32 {v(ACCA+i)}, 0")
        c("q projection: consume wq")
        self.wcons(51)
        self.rowreduce(ACCA)
        RA = T + 6
        e(f"v_lshlrev_b32 {v(RA)}, 5, {v(C)}"); e(f"v_lshl_add_u32 {v(RA)}, {v(R)}, 3, {v(RA)}")
        e(f"v_add_u32 {v(T+7)}, {s(S_T+6)}, {v(RA)}")
        e(f"ds_write_b64 {v(T+7)}, {v(ACCA,2)} offset:{L_RQ}")
        e(f"s_cmp_lg_u32 {s(S_W)}, 0"); e("s_cbranch_scc1 L_nozero")
        e(f"v_readfirstlane_b32 {s(S_T+7)}, {v(V_ATOM)}")
        e(f"s_cmp_lg_u32 {s(S_T+7)}, 0"); e("s_cbranch_scc1 L_nozero")
        e(f"s_mov_b32 {s(S_ZERO)}, 1")
        for i in range(4): e(f"v_mov_b32 {v(ACCA+4+i)}, 0")
        e(f"s_lshl_b32 {s(S_T+7)}, {s(S_B)}, 12")
        for i in range(4):
            e(f"buffer_store_dwordx4 {v(ACCA+4,4)}, {v(V_KV)}, {s(SRD_WS,4)}, {s(S_T+7)} offen offset:{i*1024} sc1")
        e(f"s_add_u32 {s(S_T+7)}, {s(S_T+7)}, {WS_FFN}")
        for i in range(4):
            e(f"buffer_store_dwordx4 {v(ACCA+4,4)}, {v(V_KV)}, {s(SRD_WS,4)}, {s(S_T+7)} offen offset:{i*1024} sc1")
        e(f"s_lshl_b32 {s(S_T+7)}, {s(S_B)}, 8"); e(f"s_add_u32 {s(S_T+7)}, {s(S_T+7)}, {WS_CNT}")
        e(f"v_lshlrev_b32 {v(T+8)}, 2, v0")
        e(f"buffer_store_dword {v(ACCA+4)}, {v(T+8)}, {s(SRD_WS,4)}, {s(S_T+7)} offen sc1")
        lab("L_nozero")
        e("s_waitcnt lgkmcnt(0)"); e("s_barrier")
        c("q: lane (r,c) sums columns 8c+2r, 8c+2r+1 over 8 waves")
        QT = TK
        for w in range(8): e(f"ds_read_b64 {v(QT+2*w,2)}, {v(RA)} offset:{L_RQ + w*512}")
        e("s_waitcnt lgkmcnt(0)")
        for st in (8, 4, 2):
            for i in range(0, st, 2):
                e(f"v_add_f32 {v(QT+i)}, {v(QT+i)}, {v(QT+i+st)}"); e(f"v_add_f32 {v(QT+i+1)}, {v(QT+i+1)}, {v(QT+i+1+st)}")
        e(f"v_cvt_pk_bf16_f32 {v(VQ)}, {v(QT)}, {v(QT+1)}")
        e(f"v_mov_b32 {v(VQ+2)}, {v(VQ)}")
        self.nop(2)
        e(f"v_permlane32_swap_b32 {v(VQ)}, {v(VQ+2)}")
        e(f"v_mov_b32 {v(VQ+1)}, {v(VQ)}"); e(f"v_mov_b32 {v(VQ+3)}, {v(VQ+2)}")
        self.nop(2)
        e(f"v_permlane16_swap_b32 {v(VQ)}, {v(VQ+1)}")
        e(f"v_permlane16_swap_b32 {v(VQ+2)}, {v(VQ+3)}")
        e(f"s_cmp_eq_u32 {s(S_ZERO)}, 0"); e("s_cbranch_scc1 L_noflag")
        e("s_waitcnt vmcnt(0)")
        e(f"v_mov_b32 {v(T+8)}, 4"); e(f"v_mov_b32 {v(T+9)}, 1")
        e("s_mov_b64 exec, 1")
        e(f"buffer_store_dword {v(T+9)}, {v(T+8)}, {s(SRD_D,4)}, {s(S_T+4)} offen sc1")
        e("s_mov_b64 exec, -1")
        lab("L_noflag")
        e(f"v_mov_b32 {v(V_MAX)}, 0xff800000")
        e(f"s_lshl_b32 {s(S_T+7)}, {s(S_W)}, 11"); e(f"s_add_u32 {s(S_T+7)}, {s(S_T+7)}, {L_S}")
        e(f"v_lshlrev_b32 {v(V_LS)}, 2, v0"); e(f"v_add_u32 {v(V_LS)}, {s(S_T+7)}, {v(V_LS)}")
        e(f"v_and_b32 {v(V_LP)}, 3, {v(C)}"); e(f"v_lshl_add_u32 {v(V_LP)}, {v(V_LP)}, 2, {v(R)}"); e(f"v_lshlrev_b32 {v(V_LP)}, 2, {v(V_LP)}")
        e(f"v_mov_b32 {v(T+9)}, {v(V_LP)}")
        e(f"v_add_u32 {v(V_LP)}, {s(S_T+6)}, {v(V_LP)}")
        for i in range(8): e(f"v_mov_b32 {v(ACCA+i)}, 0")
        e(f"s_mov_b32 {s(S_IT)}, 0")
        lab("L_kloop")
        e(f"ds_read_b32 {v(PW_LO)}, {v(V_LP)} offset:{L_XN}")
        e(f"v_add_u32 {v(V_LP)}, 64, {v(V_LP)}")
        e(f"s_cmp_lg_u32 {s(S_W)}, 0"); e("s_cbranch_scc1 L_nopoll")
        e(f"v_mov_b32 {v(T+8)}, 4")
        e(f"buffer_load_dword {v(V_FLAG)}, {v(T+8)}, {s(SRD_D,4)}, {s(S_T+4)} offen sc1")
        lab("L_nopoll")
        e(f"s_cmp_eq_u32 {s(S_IT)}, 7"); e("s_cbranch_scc0 L_nosw")
        e(f"s_add_u32 {s(SRD_KV)}, s8, {s(S_T+2)}"); e(f"s_addc_u32 {s(SRD_KV+1)}, s9, 0")
        e(f"s_lshl_b32 {s(S_KVOFF)}, {s(S_W)}, 12")
        e(f"s_lshl_b32 {s(S_T+7)}, {s(S_H)}, 18")
        e(f"s_add_u32 {s(SRD_W)}, s18, {s(S_T+7)}"); e(f"s_addc_u32 {s(SRD_W+1)}, s19, 0")
        e(f"s_cmp_lt_u32 {s(S_H)}, 28"); e(f"s_cselect_b32 {s(SRD_W+2)}, 262144, 0")
        e(f"s_lshl_b32 {s(S_WOFF)}, {s(S_W)}, 8"); e(f"s_mov_b32 {s(S_WSTEP)}, 8192")
        e(f"v_mov_b32 {v(V_W)}, {v(V_O)}")
        lab("L_nosw")
        for p in range(20):
            k, i = self.kind(p)
            slot = RING + 4*p
            e("s_waitcnt vmcnt(19)")
            if k == 'K':
                e(f"v_dot2_f32_bf16 {v(TK+i)}, {v(slot)}, {v(VQ)}, 0")
                for d in range(1, 4): e(f"v_dot2_f32_bf16 {v(TK+i)}, {v(slot+d)}, {v(VQ+d)}, {v(TK+i)}")
            else:
                if i == 0:
                    e("s_waitcnt lgkmcnt(0)"); e(f"v_lshlrev_b32 {v(PW_HI)}, 16, {v(PW_LO)}")
                self.pv(ACCW, PW_LO, PW_HI, slot, i)
            self.issue(p)
        c("transposing reduction over the 16 lanes of a row")
        t = TK
        for i in range(8): e(f"v_add_f32_dpp {v(t+i)}, {v(t+i)}, {v(t+i)} row_ror:8 row_mask:0xf bank_mask:0x3")
        for i in range(8): e(f"v_add_f32_dpp {v(t+i)}, {v(t+i+8)}, {v(t+i+8)} row_ror:8 row_mask:0xf bank_mask:0xc")
        for i in range(4): e(f"v_add_f32_dpp {v(t+i)}, {v(t+i)}, {v(t+i)} row_shl:4 row_mask:0xf bank_mask:0x5")
        for i in range(4): e(f"v_add_f32_dpp {v(t+i)}, {v(t+i+4)}, {v(t+i+4)} row_shr:4 row_mask:0xf bank_mask:0xa")
        for i in range(2):
            e(f"v_cndmask_b32 {v(t+4+i)}, {v(t+i)}, {v(t+i+2)}, {s(S_M1,2)}")
            e(f"v_cndmask_b32 {v(t+6+i)}, {v(t+i+2)}, {v(t+i)}, {s(S_M1,2)}")
        self.nop(1)
        for i in range(2):
            e(f"v_add_f32_dpp {v(t+i)}, {v(t+6+i)}, {v(t+4+i)} quad_perm:[2,3,0,1] row_mask:0xf bank_mask:0xf")
        e(f"v_cndmask_b32 {v(t+4)}, {v(t)}, {v(t+1)}, {s(S_M0,2)}")
        e(f"v_cndmask_b32 {v(t+6)}, {v(t+1)}, {v(t)}, {s(S_M0,2)}")
        self.nop(2)
        e(f"v_add_f32_dpp {v(t)}, {v(t+6)}, {v(t+4)} quad_perm:[1,0,3,2] row_mask:0xf bank_mask:0xf")
        self.bf16r(t, t)
        e(f"v_mul_f32 {v(t)}, 0x3db504f3, {v(t)}")
        self.bf16r(t, t)
        e(f"v_max_f32 {v(V_MAX)}, {v(V_MAX)}, {v(t)}")
        e(f"ds_write_b32 {v(V_LS)}, {v(t)}")
        e(f"v_add_u32 {v(V_LS)}, 256, {v(V_LS)}")
        e(f"s_add_u32 {s(S_IT)}, {s(S_IT)}, 1"); e(f"s_cmp_lt_u32 {s(S_IT)}, 8"); e("s_cbranch_scc1 L_kloop")
        c("local max / sum")
        e(f"v_subrev_u32 {v(V_LS)}, 2048, {v(V_LS)}")
        SC = TK
        e("s_waitcnt lgkmcnt(0)")
        for j in range(8): e(f"ds_read_b32 {v(SC+j)}, {v(V_LS)} offset:{j*256}")
        self.allreduce(V_MAX, T + 2, "v_max_f32")
        e("s_waitcnt lgkmcnt(0)")
        LOG2E = "0x3fb8aa3b"
        e(f"s_mov_b32 {s(S_T+7)}, {LOG2E}")
        for j in range(8):
            e(f"v_sub_f32 {v(SC+8+j)}, {v(SC+j)}, {v(V_MAX)}")
            e(f"v_mul_f32 {v(SC+8+j)}, {s(S_T+7)}, {v(SC+8+j)}")
        for j in range(8): e(f"v_exp_f32 {v(SC+8+j)}, {v(SC+8+j)}")
        self.nop(1)
        for st in (4, 2, 1):
            for i in range(st): e(f"v_add_f32 {v(SC+8+i)}, {v(SC+8+i)}, {v(SC+8+i+st)}")
        self.allreduce(SC + 8, T + 2, "v_add_f32")
        e(f"v_mov_b32 {v(T+2)}, {v(V_MAX)}"); e(f"v_mov_b32 {v(T+3)}, {v(SC+8)}")
        e(f"s_lshl_b32 {s(S_T+8)}, {s(S_W)}, 3"); e(f"v_mov_b32 {v(T+4)}, {s(S_T+8)}")
        e(f"ds_write_b64 {v(T+4)}, {v(T+2,2)} offset:{L_ML}")
        self.rowreduce(ACCW)
        e(f"ds_write_b64 {v(T+7)}, {v(ACCW,2)} offset:{L_RH}")
        e(f"s_cmp_lg_u32 {s(S_W)}, 0"); e("s_cbranch_scc1 L_flagok")
        e(f"v_readfirstlane_b32 {s(S_T+8)}, {v(V_FLAG)}")
        e(f"s_cmp_lg_u32 {s(S_T+8)}, 0"); e("s_cbranch_scc1 L_flagok")
        e(f"s_mov_b32 {s(S_T+7)}, 0x40000")
        lab("L_spin")
        e(f"s_sub_u32 {s(S_T+7)}, {s(S_T+7)}, 1"); e("s_cbranch_scc1 L_flagok")
        e(f"v_mov_b32 {v(T+8)}, 4")
        e(f"buffer_load_dword {v(V_FLAG)}, {v(T+8)}, {s(SRD_D,4)}, {s(S_T+4)} offen sc1")
        e("s_waitcnt vmcnt(0)")
        e(f"v_readfirstlane_b32 {s(S_T+8)}, {v(V_FLAG)}")
        e(f"s_cmp_lg_u32 {s(S_T+8)}, 0"); e("s_cbranch_scc0 L_spin")
        lab("L_flagok")
        e("s_waitcnt lgkmcnt(0)"); e("s_barrier")
        c("global max / sum, p = bf16(e / L)")
        ML = TK + 16
        e(f"v_mov_b32 {v(T+4)}, 0")
        for i in range(4): e(f"ds_read_b128 {v(ML+4*i,4)}, {v(T+4)} offset:{L_ML+16*i}")
        e(f"v_lshl_add_u32 {v(T+5)}, {v(C)}, 2, {v(R)}"); e(f"v_lshlrev_b32 {v(T+5)}, 2, {v(T+5)}")
        HT = TK + 32
        e(f"v_add_u32 {v(HT+16)}, {L_RH}, {v(T+5)}")
        for w in range(8): e(f"ds_read2st64_b32 {v(HT+2*w,2)}, {v(HT+16)} offset0:{2*w} offset1:{2*w+1}")
        e("s_waitcnt lgkmcnt(0)")
        M = T + 2
        e(f"v_max_f32 {v(M)}, {v(ML)}, {v(ML+2)}")
        for w in range(2, 8): e(f"v_max_f32 {v(M)}, {v(M)}, {v(ML+2*w)}")
        for w in range(8):
            e(f"v_sub_f32 {v(ML+2*w)}, {v(ML+2*w)}, {v(M)}"); e(f"v_mul_f32 {v(ML+2*w)}, {s(S_T+7)}, {v(ML+2*w)}")
        for w in range(8): e(f"v_exp_f32 {v(ML+2*w)}, {v(ML+2*w)}")
        self.nop(1)
        e(f"v_mul_f32 {v(T+3)}, {v(ML)}, {v(ML+1)}")
        for w in range(1, 8): e(f"v_fmac_f32 {v(T+3)}, {v(ML+2*w)}, {v(ML+2*w+1)}")
        e(f"v_rcp_f32 {v(T+8)}, {v(T+3)}")
        for j in range(8):
            e(f"v_sub_f32 {v(SC+8+j)}, {v(SC+j)}, {v(M)}"); e(f"v_mul_f32 {v(SC+8+j)}, {s(S_T+7)}, {v(SC+8+j)}")
        for j in range(8): e(f"v_exp_f32 {v(SC+8+j)}, {v(SC+8+j)}")
        self.nop(1)
        for j in range(8):
            x = SC + 8 + j
            e(f"v_mul_f32 {v(SC+j)}, {v(x)}, {v(T+8)}")
            e(f"v_fma_f32 {v(T+4)}, -{v(SC+j)}, {v(T+3)}, {v(x)}")
            e(f"v_fma_f32 {v(SC+j)}, {v(T+4)}, {v(T+8)}, {v(SC+j)}")
            e(f"v_cvt_pk_bf16_f32 {v(SC+j)}, {v(SC+j)}, 0")
            e(f"ds_write_b32 {v(V_LS)}, {v(SC+j)} offset:{j*256}")
        for st in (8, 4, 2):
            for i in range(0, st, 2):
                e(f"v_add_f32 {v(HT+i)}, {v(HT+i)}, {v(HT+i+st)}"); e(f"v_add_f32 {v(HT+i+1)}, {v(HT+i+1)}, {v(HT+i+1+st)}")
        e(f"v_max_f32 {v(HT)}, 0, {v(HT)}"); e(f"v_max_f32 {v(HT+1)}, 0, {v(HT+1)}")
        e(f"v_cvt_pk_bf16_f32 {v(HT)}, {v(HT)}, 0"); e(f"v_cvt_pk_bf16_f32 {v(HT+1)}, {v(HT+1)}, 0")
        e(f"s_add_u32 {s(S_T+8)}, {s(S_T+6)}, {L_HP}")
        e(f"v_add_u32 {v(T+5)}, {s(S_T+8)}, {v(T+5)}")
        e(f"ds_write_b32 {v(T+5)}, {v(HT)}"); e(f"ds_write_b32 {v(T+5)}, {v(HT+1)} offset:256")
        e(f"v_add_u32 {v(V_LP)}, {s(S_T+8)}, {v(T+9)}")
        for i in range(16): e(f"v_mov_b32 {v(ACCA+i)}, 0")
        def vbody(last):
            e("s_waitcnt lgkmcnt(0)")
            e(f"ds_read_b32 {v(PV_LO)}, {v(V_LS)}"); e(f"ds_read_b32 {v(PW_LO)}, {v(V_LP)}")
            e(f"v_add_u32 {v(V_LS)}, 256, {v(V_LS)}"); e(f"v_add_u32 {v(V_LP)}, 64, {v(V_LP)}")
            e("s_waitcnt lgkmcnt(0)")
            e(f"v_lshlrev_b32 {v(PV_HI)}, 16, {v(PV_LO)}"); e(f"v_lshlrev_b32 {v(PW_HI)}, 16, {v(PW_LO)}")
            nwo = 0
            for p in range(20):
                k, i = self.kind(p)
                slot = RING + 4*p
                if last: e(f"s_waitcnt vmcnt({19 - p + nwo})")
                else: e("s_waitcnt vmcnt(19)")
                if k == 'K': self.pv(ACCA, PV_LO, PV_HI, slot, i)
                else: self.pv(ACCW, PW_LO, PW_HI, slot, i)
                if last:
                    for _ in range(2 if p < 12 else 1):
                        self.issueA(nwo, V_O, 8192); nwo += 1
                else:
                    self.issue(p)
            if last: assert nwo == 32
        e(f"s_mov_b32 {s(S_IT)}, 0")
        lab("L_vloop")
        vbody(False)
        e(f"s_add_u32 {s(S_IT)}, {s(S_IT)}, 1"); e(f"s_cmp_lt_u32 {s(S_IT)}, 7"); e("s_cbranch_scc1 L_vloop")
        e(f"s_lshl_b32 {s(S_T+7)}, {s(S_H)}, 18")
        e(f"s_add_u32 {s(SRD_A)}, s12, {s(S_T+7)}"); e(f"s_addc_u32 {s(SRD_A+1)}, s13, 0")
        e(f"s_mov_b32 {s(SRD_A+2)}, 262144")
        e(f"s_lshl_b32 {s(S_AOFF)}, {s(S_W)}, 8")
        vbody(True)
        c("o partials -> LDS ; FFN partial -> atomics")
        self.rowreduce(ACCA)
        e(f"ds_write_b64 {v(T+7)}, {v(ACCA,2)} offset:{L_RO}")
        self.rowreduce(ACCW)
        e(f"s_lshl_b32 {s(S_T+7)}, {s(S_B)}, 12"); e(f"s_add_u32 {s(S_T+7)}, {s(S_T+7)}, {s(S_T+6)}")
        e(f"s_add_u32 {s(S_T+8)}, {s(S_T+7)}, {WS_FFN}")
        e(f"buffer_atomic_add_f32 {v(ACCW)}, {v(RA)}, {s(SRD_WS,4)}, {s(S_T+8)} offen")
        e(f"buffer_atomic_add_f32 {v(ACCW+1)}, {v(RA)}, {s(SRD_WS,4)}, {s(S_T+8)} offen offset:4")
        e("s_waitcnt lgkmcnt(0)"); e("s_barrier")
        OT = RING
        e(f"v_lshl_add_u32 {v(T+5)}, {v(C)}, 2, {v(R)}"); e(f"v_lshlrev_b32 {v(T+5)}, 2, {v(T+5)}")
        e(f"v_add_u32 {v(T+5)}, {L_RO}, {v(T+5)}")
        for w in range(8): e(f"ds_read2st64_b32 {v(OT+2*w,2)}, {v(T+5)} offset0:{2*w} offset1:{2*w+1}")
        for i in range(8): e(f"v_mov_b32 {v(ACCA+i)}, 0")
        e("s_waitcnt lgkmcnt(0)")
        for st in (8, 4, 2):
            for i in range(0, st, 2):
                e(f"v_add_f32 {v(OT+i)}, {v(OT+i)}, {v(OT+i+st)}"); e(f"v_add_f32 {v(OT+i+1)}, {v(OT+i+1)}, {v(OT+i+1+st)}")
        e(f"v_cvt_pk_bf16_f32 {v(PA)}, {v(OT)}, 0"); e(f"v_cvt_pk_bf16_f32 {v(PA+2)}, {v(OT+1)}, 0")
        e(f"v_lshlrev_b32 {v(PA+1)}, 16, {v(PA)}"); e(f"v_lshlrev_b32 {v(PA+3)}, 16, {v(PA+2)}")
        self.nop(1)
        self.wcons(33)
        self.rowreduce(ACCA)
        e(f"buffer_atomic_add_f32 {v(ACCA)}, {v(RA)}, {s(SRD_WS,4)}, {s(S_T+7)} offen")
        e(f"buffer_atomic_add_f32 {v(ACCA+1)}, {v(RA)}, {s(SRD_WS,4)}, {s(S_T+7)} offen offset:4")
        e("s_waitcnt vmcnt(0)"); e("s_barrier")
        e(f"s_cmp_lg_u32 {s(S_W)}, 0"); e("s_cbranch_scc1 L_fin")
        e(f"s_lshl_b32 {s(S_T+7)}, {s(S_B)}, 8"); e(f"s_add_u32 {s(S_T+7)}, {s(S_T+7)}, {WS_CNT}")
        e(f"v_mov_b32 {v(T)}, 1"); e(f"v_mov_b32 {v(T+1)}, 0")
        e("s_mov_b64 exec, 1")
        e(f"buffer_atomic_add {v(T)}, {v(T+1)}, {s(SRD_WS,4)}, {s(S_T+7)} offen sc0")
        e("s_mov_b64 exec, -1")
        e("s_waitcnt vmcnt(0)")
        e(f"v_readfirstlane_b32 {s(S_T+8)}, {v(T)}")
        e(f"s_cmp_lg_u32 {s(S_T+8)}, 31"); e("s_cbranch_scc1 L_fin")
        c("last arriver of this batch: out = bf16(bf16(x + bf16(att)) + bf16(ffn))")
        e(f"s_lshl_b32 {s(S_T+7)}, {s(S_B)}, 12")
        e(f"v_lshlrev_b32 {v(T)}, 6, v0")
        e(f"v_lshlrev_b32 {v(T+1)}, 5, v0")
        A_, F_, X_ = RING, RING + 16, RING + 32
        for i in range(4): e(f"buffer_load_dwordx4 {v(A_+4*i,4)}, {v(T)}, {s(SRD_WS,4)}, {s(S_T+7)} offen offset:{16*i} sc1")
        e(f"s_add_u32 {s(S_T+7)}, {s(S_T+7)}, {WS_FFN}")
        for i in range(4): e(f"buffer_load_dwordx4 {v(F_+4*i,4)}, {v(T)}, {s(SRD_WS,4)}, {s(S_T+7)} offen offset:{16*i} sc1")
        for i in range(2): e(f"buffer_load_dwordx4 {v(X_+4*i,4)}, {v(T+1)}, {s(SRD_X,4)}, 0 offen offset:{16*i}")
        e(f"s_lshl_b32 {s(S_T+7)}, {s(S_B)}, 11")
        e(f"s_add_u32 {s(SRD_O)}, s20, {s(S_T+7)}"); e(f"s_addc_u32 {s(SRD_O+1)}, s21, 0")
        e(f"s_mov_b32 {s(SRD_O+2)}, 2048"); e(f"s_mov_b32 {s(SRD_O+3)}, 0x20000")
        e("s_waitcnt vmcnt(0)")
        O_ = RING + 40
        for d in range(8):
            a0, a1, f0, f1, xd = A_+2*d, A_+2*d+1, F_+2*d, F_+2*d+1, X_+d
            e(f"v_cvt_pk_bf16_f32 {v(T+2)}, {v(a0)}, {v(a1)}")
            e(f"v_cvt_pk_bf16_f32 {v(T+3)}, {v(f0)}, {v(f1)}")
            e(f"v_lshlrev_b32 {v(a0)}, 16, {v(T+2)}"); e(f"v_and_b32 {v(a1)}, 0xffff0000, {v(T+2)}")
            e(f"v_lshlrev_b32 {v(f0)}, 16, {v(T+3)}"); e(f"v_and_b32 {v(f1)}, 0xffff0000, {v(T+3)}")
            e(f"v_lshlrev_b32 {v(T+4)}, 16, {v(xd)}"); e(f"v_and_b32 {v(T+5)}, 0xffff0000, {v(xd)}")
            e(f"v_add_f32 {v(a0)}, {v(T+4)}, {v(a0)}"); e(f"v_add_f32 {v(a1)}, {v(T+5)}, {v(a1)}")
            e(f"v_cvt_pk_bf16_f32 {v(T+2)}, {v(a0)}, {v(a1)}")
            e(f"v_lshlrev_b32 {v(a0)}, 16, {v(T+2)}"); e(f"v_and_b32 {v(a1)}, 0xffff0000, {v(T+2)}")
            e(f"v_add_f32 {v(a0)}, {v(a0)}, {v(f0)}"); e(f"v_add_f32 {v(a1)}, {v(a1)}, {v(f1)}")
            e(f"v_cvt_pk_bf16_f32 {v(O_+d)}, {v(a0)}, {v(a1)}")
        for i in range(2): e(f"buffer_store_dwordx4 {v(O_+4*i,4)}, {v(T+1)}, {s(SRD_O,4)}, 0 offen offset:{16*i}")
        lab("L_fin")
        if o.stamps:
            e("s_memrealtime s[92:93]")
            e(f"s_mul_i32 s94, s2, 16"); e(f"s_add_u32 s94, s94, {s(S_W)}"); e("s_lshl_b32 s94, s94, 4")
            e("s_add_u32 s94, s94, 0x100000")
            e("s_waitcnt lgkmcnt(0)")
            e(f"v_mov_b32 {v(T)}, s90"); e(f"v_mov_b32 {v(T+1)}, s91"); e(f"v_mov_b32 {v(T+2)}, s92"); e(f"v_mov_b32 {v(T+3)}, s93"); e(f"v_mov_b32 {v(T+4)}, s94")
            e(f"global_store_dwordx4 {v(T+4)}, {v(T,4)}, s[24:25]")
        lab("L_done")
        e("s_endpgm")
        L.append('.section .rodata,"a"'); L.append(".p2align 6"); L.append(f".amdhsa_kernel {KN}")
        L.append("  .amdhsa_next_free_vgpr 256"); L.append("  .amdhsa_next_free_sgpr 96"); L.append("  .amdhsa_accum_offset 256")
        L.append("  .amdhsa_group_segment_fixed_size 0"); L.append("  .amdhsa_kernarg_size 88"); L.append("  .amdhsa_user_sgpr_count 2")
        L.append("  .amdhsa_user_sgpr_kernarg_segment_ptr 1"); L.append("  .amdhsa_system_sgpr_workgroup_id_x 1")
        L.append("  .amdhsa_float_denorm_mode_32 3")
        L.append(".end_amdhsa_kernel")
        return "\n".join(L) + "\n"

if __name__ == "__main__":
    ap = argparse.ArgumentParser()
    ap.add_argument("-o", default="k.s"); ap.add_argument("--kvflags", default="nt"); ap.add_argument("--wflags", default="")
    ap.add_argument("--stamps", action="store_true")
    a = ap.parse_args()
    txt = Gen(a).gen()
    open(a.o, "w").write(txt)
    import hazard
    errs = hazard.check(txt)
    print(a.o, len(txt), "bytes,", len(errs), "hazards")
```
